```python
import torch

def _softmax(x, axis=-1):
    return torch.softmax(x, dim=axis)
def _gelu(x):
    return torch.nn.functional.gelu(x, approximate="tanh")
def _silu(x):
    return torch.nn.functional.silu(x)
def _sigmoid(x):
    return torch.sigmoid(x)
def _layernorm(x, axis=-1, eps=1e-5):
    m = x.mean(dim=axis, keepdim=True)
    v = x.var(dim=axis, keepdim=True, unbiased=False)
    return (x - m) / torch.sqrt(v + eps)
def _scatter_add(tgt, idx, src, axis=0):
    return tgt.clone().index_add_(axis, idx, src)
def _segment_sum(src, seg, n):
    out = torch.zeros((n,) + src.shape[1:], dtype=src.dtype)
    return out.index_add_(0, seg, src)
def _pad(x, pw):
    flat = tuple(v for pair in reversed(pw) for v in pair)
    return torch.nn.functional.pad(x, flat)

kernel_name = 'parallel_sum__sliding_block_cached__mixer_channel_mlp__decode'

def setup_inputs():

    _w = (lambda a: (lambda t: t.to(torch.bfloat16) if t.is_floating_point() else t)(torch.as_tensor(a)))
    def _A_setup():
        B, Sq, D = 1, 1, 640
        Hq, Hkv, Sk, Dh = 32, 32, 4096, 128
        assert Hq % Hkv == 0, (Hq, Hkv)
        return {
            "x": _w((lambda *s: torch.randn(*s, dtype=torch.bfloat16) * 0.05)(B, Sq, D)),
            "k_cache": _w((lambda *s: torch.randn(*s, dtype=torch.bfloat16) * 3.2)(B, Hkv, Sk, Dh)),
            "v_cache": _w((lambda *s: torch.randn(*s, dtype=torch.bfloat16) * 0.4)(B, Hkv, Sk, Dh)),
            "wq": _w((lambda *s: torch.randn(*s, dtype=torch.bfloat16) * 3.2)(D, Hq * Dh) * (D ** -0.5)),
            "wo": _w((lambda *s: torch.randn(*s, dtype=torch.bfloat16) * 0.4)(Hq * Dh, D) * ((Hq * Dh) ** -0.5)),
        }
    _A_in = _A_setup()

    def _B_setup():
        B, S, D, F = 1, 1, 640, 1728
        return {
            "x": _w((lambda *s: torch.randn(*s, dtype=torch.bfloat16) * 0.05)(B, S, D)),
            "w1": _w((lambda *s: torch.randn(*s, dtype=torch.bfloat16) * 3.2)(D, F) * (D ** -0.5)),
            "b1": _w((lambda *s: torch.randn(*s, dtype=torch.bfloat16) * 0.8)(F)),
            "w2": _w((lambda *s: torch.randn(*s, dtype=torch.bfloat16) * 0.1)(F, D) * (F ** -0.5)),
            "b2": _w((lambda *s: torch.randn(*s, dtype=torch.bfloat16) * 0.1)(D)),
        }
    _B_in = _B_setup()

    return {
        "A_x": _A_in["x"],
        "A_k_cache": _A_in["k_cache"],
        "A_v_cache": _A_in["v_cache"],
        "A_wq": _A_in["wq"],
        "A_wo": _A_in["wo"],
        "B_x": _B_in["x"],
        "B_w1": _B_in["w1"],
        "B_b1": _B_in["b1"],
        "B_w2": _B_in["w2"],
        "B_b2": _B_in["b2"],
    }

def reference(A_x, A_k_cache, A_v_cache, A_wq, A_wo, B_x, B_w1, B_b1, B_w2, B_b2):
    def _A_ref(x, k_cache, v_cache, wq, wo):
        B, Sq, D = x.shape
        Hq, Dh = 32, 128
        Hkv, Sk = k_cache.shape[1], k_cache.shape[2]
        W = min(4096, max(256, Sk // 4))
        rep = Hq // Hkv
        q = (lambda x, *d: x.permute(*d))((x @ wq).reshape(B, Sq, Hq, Dh), 0, 2, 1, 3)
        k = (lambda x, n, axis: torch.repeat_interleave(x, n, dim=axis))(k_cache[:, :, Sk - W:, :], rep, axis=1)
        v = (lambda x, n, axis: torch.repeat_interleave(x, n, dim=axis))(v_cache[:, :, Sk - W:, :], rep, axis=1)
        scores = torch.einsum("bhqd,bhkd->bhqk", q, k) * (Dh ** -0.5)
        p = _softmax(scores, axis=-1)
        o = torch.einsum("bhqk,bhkd->bhqd", p, v)
        return (lambda x, *d: x.permute(*d))(o, 0, 2, 1, 3).reshape(B, Sq, Hq * Dh) @ wo

    def _B_ref(x, w1, b1, w2, b2):
        y = _layernorm(x, axis=-1)
        h = _gelu(torch.einsum("bsd,df->bsf", y, w1) + b1)
        return torch.einsum("bsf,fd->bsd", h, w2) + b2

    x = A_x
    xn = _layernorm(x, axis=-1)
    return x + _A_ref(xn, A_k_cache, A_v_cache, A_wq, A_wo) + _B_ref(xn, B_w1, B_b1, B_w2, B_b2)
```

```python
import sys

NAME = "parallel_sum__sliding_block_cached__mixer_channel_mlp__decode"
KN = NAME + "_kernel"

HEADER = open("cdna_kernels/%s.s.ref" % NAME).read().split("; Override launch geometry")[0]

XN = 0
YF = 2560
QP = 5120
QL = 9216
OP = 9472
ML = 13568
CF = 13632
W1P = 13696
OUTP = 14080
LDS_BYTES = 14080 + 20480

QREG = 0x1000
OREG = 0x80000
FREG = 0x100000

L = []
def e(s=""):
    L.append("    " + s if s and not s.endswith(":") else s)

def nop(n):
    while n > 0:
        k = min(n, 16)
        e("s_nop %d" % (k - 1))
        n -= k

S_WG, S_WAVE, S_H, S_S = "s2", "s3", "s4", "s5"
P_X, P_K, P_V, P_WQ, P_WO, P_W1, P_B1, P_W2, P_B2, P_OUT, P_DBG, P_WS = (
    "s[16:17]", "s[18:19]", "s[20:21]", "s[22:23]", "s[24:25]", "s[28:29]", "s[30:31]",
    "s[32:33]", "s[34:35]", "s[36:37]", "s[38:39]", "s[40:41]")

LOG2E = "0x3fb8aa3b"
SCALE = "0x3db504f3"
INV640 = "0x3acccccd"
EPS = "0x3727c5ac"


def allreduce_sum(v, stmp):
    for mod in ("quad_perm:[1,0,3,2]", "quad_perm:[2,3,0,1]", "row_half_mirror", "row_mirror"):
        nop(2)
        e(f"v_add_f32_dpp {v}, {v}, {v} {mod} row_mask:0xf bank_mask:0xf")
    nop(1)
    for i in range(4):
        e(f"v_readlane_b32 {stmp[i]}, {v}, {16*i}")
    nop(2)
    e(f"v_mov_b32 {v}, {stmp[0]}")
    for i in range(1, 4):
        e(f"v_add_f32 {v}, {stmp[i]}, {v}")


def layernorm(a, out, t, stmp):
    vs, vm, vv, vp, vmb, vr, vq = t[0:7]
    e(f"v_add_f32 {vs}, {a[0]}, {a[1]}")
    for i in range(2, 10):
        e(f"v_add_f32 {vs}, {a[i]}, {vs}")
    allreduce_sum(vs, stmp)
    e(f"v_mul_f32 {vm}, {INV640}, {vs}")
    e(f"v_sub_f32 {vq}, {a[0]}, {vm}")
    e(f"v_mul_f32 {vv}, {vq}, {vq}")
    for i in range(1, 10):
        e(f"v_sub_f32 {vq}, {a[i]}, {vm}")
        e(f"v_fmac_f32 {vv}, {vq}, {vq}")
    allreduce_sum(vv, stmp)
    e(f"v_mul_f32 {vv}, {INV640}, {vv}")
    e(f"v_cvt_pk_bf16_f32 {vp}, {vm}, {vv}")
    e(f"v_lshlrev_b32 {vmb}, 16, {vp}")
    e(f"v_and_b32 {vv}, 0xffff0000, {vp}")
    e(f"v_add_f32 {vv}, {EPS}, {vv}")
    e(f"v_cvt_pk_bf16_f32 {vp}, {vv}, {vv}")
    e(f"v_and_b32 {vv}, 0xffff0000, {vp}")
    e(f"v_sqrt_f32 {vv}, {vv}")
    nop(1)
    e(f"v_cvt_pk_bf16_f32 {vp}, {vv}, {vv}")
    e(f"v_and_b32 {vv}, 0xffff0000, {vp}")
    e(f"v_rcp_f32 {vr}, {vv}")
    for i in range(5):
        lo, hi = a[2*i], a[2*i+1]
        olo, ohi = out[2*i], out[2*i+1]
        e(f"v_sub_f32 {olo}, {lo}, {vmb}")
        e(f"v_sub_f32 {ohi}, {hi}, {vmb}")
        e(f"v_cvt_pk_bf16_f32 {vp}, {olo}, {ohi}")
        e(f"v_lshlrev_b32 {olo}, 16, {vp}")
        e(f"v_and_b32 {ohi}, 0xffff0000, {vp}")
        e(f"v_mul_f32 {olo}, {olo}, {vr}")
        e(f"v_mul_f32 {ohi}, {ohi}, {vr}")
        e(f"v_cvt_pk_bf16_f32 {vp}, {olo}, {ohi}")
        e(f"v_lshlrev_b32 {olo}, 16, {vp}")
        e(f"v_and_b32 {ohi}, 0xffff0000, {vp}")


def poll_tail(label, vbad, scnt):
    e(f"v_cmp_ne_u32 vcc, 0, {vbad}")
    e(f"s_cbranch_vccz {label}_done")
    e(f"s_sub_u32 {scnt}, {scnt}, 1")
    e(f"s_cmp_eq_u32 {scnt}, 0")
    e(f"s_cbranch_scc1 {label}_done")
    e("s_sleep 1")
    e(f"s_branch {label}")
    e(f"{label}_done:")


SPIN = 400000


def gen():
    e(f"s_cmp_ge_u32 {S_WG}, 256")
    e("s_cbranch_scc1 L_end")
    e("s_load_dwordx16 s[16:31], s[0:1], 0")
    e("s_load_dwordx8 s[32:39], s[0:1], 64")
    e("s_load_dwordx2 s[40:41], s[0:1], 96")
    e("v_lshrrev_b32 v2, 6, v0")
    e("v_and_b32 v1, 63, v0")
    e(f"s_and_b32 {S_H}, {S_WG}, 31")
    e(f"v_readfirstlane_b32 {S_WAVE}, v2")
    e(f"s_lshr_b32 {S_S}, {S_WG}, 5")
    e("v_lshlrev_b32 v3, 2, v1")
    e("v_lshlrev_b32 v4, 4, v1")
    e("v_lshlrev_b32 v5, 3, v1")
    e("s_waitcnt lgkmcnt(0)")
    e(f"s_cmp_eq_u32 {S_WAVE}, 8")
    e("s_cbranch_scc1 L_comm")
    gen_data()
    e("s_branch L_end")
    e("L_comm:")
    gen_comm()
    e("L_end:")


def gen_data():
    vX = ["v%d" % i for i in range(10, 15)]
    vA = ["v%d" % i for i in range(16, 26)]
    vN = ["v%d" % i for i in range(26, 36)]
    vY = ["v%d" % i for i in range(36, 46)]
    vT = ["v%d" % i for i in range(46, 54)]
    vWq = ["v%d" % i for i in range(54, 64)]
    vK = ["v%d" % i for i in range(64, 80)]
    vV = ["v%d" % i for i in range(80, 96)]
    vW1 = ["v%d" % i for i in range(96, 101)]
    vB1 = "v101"
    vW2 = ["v%d" % i for i in range(102, 107)]
    vWo = ["v%d" % i for i in range(108, 118)]
    vTag = "v118"
    vOff = ["v%d" % i for i in range(120, 128)]
    st = ["s8", "s9", "s10", "s11"]

    e(f"s_mul_i32 s6, {S_S}, 80")
    e(f"s_add_u32 s6, s6, {S_WAVE}")
    e("s_lshl_b32 s7, s6, 13")
    e(f"s_lshl_b32 s12, {S_H}, 8")
    e("s_add_u32 s7, s7, s12")
    e(f"s_lshl_b32 s13, {S_H}, 20")
    e(f"s_lshl_b32 s14, {S_S}, 7")
    e(f"s_lshl_b32 s15, {S_WAVE}, 4")
    e("s_add_u32 s14, s14, s15")
    e("s_add_u32 s14, s14, 3072")
    e("s_lshl_b32 s14, s14, 8")
    e("s_add_u32 s13, s13, s14")
    for i in range(5):
        e(f"global_load_dword {vX[i]}, v3, {P_X} offset:{256*i}")
    e(f"v_add_u32 {vOff[0]}, s7, v3")
    for i in range(10):
        if i:
            e(f"v_add_u32 {vOff[0]}, 0x10000, {vOff[0]}")
        e(f"global_load_dword {vWq[i]}, {vOff[0]}, {P_WQ}")
    e(f"v_add_u32 {vOff[1]}, s13, v4")
    for i in range(4):
        e(f"global_load_dwordx4 v[{64+4*i}:{64+4*i+3}], {vOff[1]}, {P_K} offset:{1024*i}")
    e(f"s_and_b32 s42, {S_WG}, 7")
    e(f"s_lshr_b32 s43, {S_WG}, 3")
    e("s_lshr_b32 s44, s43, 3")
    e("s_lshl_b32 s44, s44, 3")
    e("s_add_u32 s42, s42, s44")
    e("s_and_b32 s43, s43, 7")
    e("s_cmp_lt_u32 s42, 27")
    e("s_cselect_b32 s45, 1, 0")
    e("s_lshl_b32 s42, s42, 3")
    e("s_add_u32 s42, s42, s43")
    e("s_cmp_eq_u32 s45, 1")
    e("s_cselect_b32 s42, s42, 0")
    e("s_waitcnt vmcnt(14)")
    for i in range(5):
        e(f"v_lshlrev_b32 {vA[2*i]}, 16, {vX[i]}")
        e(f"v_and_b32 {vA[2*i+1]}, 0xffff0000, {vX[i]}")
    layernorm(vA, vN, vT, st)
    for i in range(5):
        e(f"ds_write_b64 v5, v[{26+2*i}:{27+2*i}] offset:{XN+512*i}")
    e("s_lshl_b32 s12, s6, 2")
    e(f"v_mov_b32 {vOff[2]}, s12")
    e("s_waitcnt lgkmcnt(0)")
    vC = vA
    for i in range(10):
        e(f"ds_read_b32 {vC[i]}, {vOff[2]} offset:{XN+32*i}")
    layernorm(vN, vY, vT, st)
    for i in range(5):
        e(f"ds_write_b64 v5, v[{36+2*i}:{37+2*i}] offset:{YF+512*i}")
    e("s_waitcnt vmcnt(4) lgkmcnt(0)")
    q0, q1, t0, t1 = vT[0], vT[1], vT[2], vT[3]
    for i in range(10):
        e(f"v_lshlrev_b32 {t0}, 16, {vWq[i]}")
        e(f"v_and_b32 {t1}, 0xffff0000, {vWq[i]}")
        if i == 0:
            e(f"v_mul_f32 {q0}, {vC[i]}, {t0}")
            e(f"v_mul_f32 {q1}, {vC[i]}, {t1}")
        else:
            e(f"v_fmac_f32 {q0}, {vC[i]}, {t0}")
            e(f"v_fmac_f32 {q1}, {vC[i]}, {t1}")
    e(f"s_lshl_b32 s12, {S_WAVE}, 9")
    e(f"v_add_u32 {vOff[2]}, s12, v5")
    e(f"ds_write_b64 {vOff[2]}, v[{vT[0][1:]}:{vT[1][1:]}] offset:{QP}")
    e("s_waitcnt lgkmcnt(0)")
    e("s_barrier")
    e(f"v_lshrrev_b32 {vOff[3]}, 2, v1")
    e("s_mov_b32 s12, 3456")
    e(f"v_mul_lo_u32 {vOff[3]}, {vOff[3]}, s12")
    e(f"v_and_b32 {vOff[4]}, 3, v1")
    e(f"v_lshl_add_u32 {vOff[3]}, {vOff[4]}, 2, {vOff[3]}")
    e(f"s_mul_i32 s12, {S_WAVE}, {80*3456}")
    e("s_lshl_b32 s14, s42, 4")
    e("s_add_u32 s12, s12, s14")
    e(f"v_add_u32 {vOff[3]}, s12, {vOff[3]}")
    for i in range(5):
        if i:
            e(f"v_add_u32 {vOff[3]}, {16*3456}, {vOff[3]}")
        e(f"global_load_dword {vW1[i]}, {vOff[3]}, {P_W1}")
    e("s_lshl_b32 s12, s42, 3")
    e(f"s_add_u32 s12, s12, {S_WAVE}")
    e("s_lshl_b32 s14, s12, 1")
    e(f"v_mov_b32 {vOff[4]}, s14")
    e(f"global_load_ushort {vB1}, {vOff[4]}, {P_B1}")
    e(f"v_add_u32 {vOff[5]}, s13, v3")
    for k in range(16):
        e(f"global_load_dword {vV[k]}, {vOff[5]}, {P_V} offset:{256*k}")
    e("s_mul_i32 s14, s12, 1280")
    e(f"v_add_u32 {vOff[6]}, s14, v3")
    for i in range(5):
        e(f"global_load_dword {vW2[i]}, {vOff[6]}, {P_W2} offset:{256*i}")
    e(f"s_lshl_b32 s14, {S_H}, 7")
    e(f"s_lshl_b32 s15, {S_S}, 4")
    e("s_add_u32 s14, s14, s15")
    e(f"s_add_u32 s14, s14, {S_WAVE}")
    e("s_mul_i32 s14, s14, 1280")
    e(f"v_add_u32 {vOff[7]}, s14, v3")
    for i in range(5):
        e(f"global_load_dword {vWo[i]}, {vOff[7]}, {P_WO} offset:{256*i}")
    e(f"v_add_u32 {vOff[7]}, {8*1280}, {vOff[7]}")
    for i in range(5):
        e(f"global_load_dword {vWo[5+i]}, {vOff[7]}, {P_WO} offset:{256*i}")
    e(f"v_mov_b32 {vOff[6]}, 0")
    e(f"global_load_dword {vTag}, {vOff[6]}, {P_WS} sc1")
    e(f"v_lshrrev_b32 {vOff[4]}, 2, v1")
    e(f"v_lshlrev_b32 {vOff[4]}, 2, {vOff[4]}")
    e(f"s_mul_i32 s14, {S_WAVE}, 320")
    e(f"v_add_u32 {vOff[4]}, s14, {vOff[4]}")
    vYc = vA[0:5]
    for i in range(5):
        e(f"ds_read_b32 {vYc[i]}, {vOff[4]} offset:{YF+64*i}")
    e("s_waitcnt vmcnt(33) lgkmcnt(0)")
    a0, a1 = vT[0], vT[1]
    for i in range(5):
        e(f"v_lshlrev_b32 {t0}, 16, {vW1[i]}")
        e(f"v_and_b32 {t1}, 0xffff0000, {vW1[i]}")
        if i == 0:
            e(f"v_mul_f32 {a0}, {vYc[i]}, {t0}")
            e(f"v_mul_f32 {a1}, {vYc[i]}, {t1}")
        else:
            e(f"v_fmac_f32 {a0}, {vYc[i]}, {t0}")
            e(f"v_fmac_f32 {a1}, {vYc[i]}, {t1}")
    for mod in ("row_ror:4", "row_ror:8"):
        nop(2)
        e(f"v_add_f32_dpp {a0}, {a0}, {a0} {mod} row_mask:0xf bank_mask:0xf")
        e(f"v_add_f32_dpp {a1}, {a1}, {a1} {mod} row_mask:0xf bank_mask:0xf")
    e(f"v_xor_b32 {vOff[4]}, 16, v1")
    e(f"v_lshlrev_b32 {vOff[4]}, 2, {vOff[4]}")
    e(f"v_xor_b32 {vOff[5]}, 32, v1")
    e(f"v_lshlrev_b32 {vOff[5]}, 2, {vOff[5]}")
    for va in (vOff[4], vOff[5]):
        e(f"ds_bpermute_b32 {t0}, {va}, {a0}")
        e(f"ds_bpermute_b32 {t1}, {va}, {a1}")
        e("s_waitcnt lgkmcnt(0)")
        e(f"v_add_f32 {a0}, {a0}, {t0}")
        e(f"v_add_f32 {a1}, {a1}, {t1}")
    e(f"v_and_b32 {vOff[4]}, 3, v1")
    e(f"v_lshlrev_b32 {vOff[4]}, 3, {vOff[4]}")
    e(f"s_lshl_b32 s14, {S_WAVE}, 5")
    e(f"v_add_u32 {vOff[4]}, s14, {vOff[4]}")
    e(f"ds_write_b64 {vOff[4]}, v[{a0[1:]}:{a1[1:]}] offset:{W1P}")
    e("s_waitcnt lgkmcnt(0)")
    e("s_barrier")
    vQ = ["v%d" % i for i in range(46, 50)]
    e(f"v_and_b32 {vOff[4]}, 15, v1")
    e(f"v_lshlrev_b32 {vOff[4]}, 4, {vOff[4]}")
    e(f"ds_read_b128 v[46:49], {vOff[4]} offset:{QL}")
    e("s_waitcnt vmcnt(33) lgkmcnt(0)")
    sc = ["v%d" % i for i in range(16, 20)]
    for j in range(4):
        for i in range(4):
            c = "0" if j == 0 else sc[i]
            e(f"v_dot2_f32_bf16 {sc[i]}, {vK[4*i+j]}, {vQ[j]}, {c}")
    nop(3)
    for mi, mod in enumerate(("quad_perm:[1,0,3,2]", "quad_perm:[2,3,0,1]", "row_half_mirror", "row_mirror")):
        for i in range(4):
            e(f"v_add_f32_dpp {sc[i]}, {sc[i]}, {sc[i]} {mod} row_mask:0xf bank_mask:0xf")
    p01, p23 = "v20", "v21"
    e(f"v_cvt_pk_bf16_f32 {p01}, {sc[0]}, {sc[1]}")
    e(f"v_cvt_pk_bf16_f32 {p23}, {sc[2]}, {sc[3]}")
    e(f"v_lshlrev_b32 {sc[0]}, 16, {p01}")
    e(f"v_and_b32 {sc[1]}, 0xffff0000, {p01}")
    e(f"v_lshlrev_b32 {sc[2]}, 16, {p23}")
    e(f"v_and_b32 {sc[3]}, 0xffff0000, {p23}")
    for i in range(4):
        e(f"v_mul_f32 {sc[i]}, {SCALE}, {sc[i]}")
    e(f"v_cvt_pk_bf16_f32 {p01}, {sc[0]}, {sc[1]}")
    e(f"v_cvt_pk_bf16_f32 {p23}, {sc[2]}, {sc[3]}")
    e(f"v_lshlrev_b32 {sc[0]}, 16, {p01}")
    e(f"v_and_b32 {sc[1]}, 0xffff0000, {p01}")
    e(f"v_lshlrev_b32 {sc[2]}, 16, {p23}")
    e(f"v_and_b32 {sc[3]}, 0xffff0000, {p23}")
    vM, vLs = "v22", "v23"
    e(f"v_max3_f32 {vM}, {sc[0]}, {sc[1]}, {sc[2]}")
    e(f"v_max_f32 {vM}, {vM}, {sc[3]}")
    nop(1)
    for i in range(4):
        e(f"v_readlane_b32 {st[i]}, {vM}, {16*i}")
    nop(2)
    e(f"v_mov_b32 {vM}, {st[0]}")
    for i in range(1, 4):
        e(f"v_max_f32 {vM}, {st[i]}, {vM}")
    pr = ["v%d" % i for i in range(24, 28)]
    for i in range(4):
        e(f"v_sub_f32 {pr[i]}, {sc[i]}, {vM}")
        e(f"v_mul_f32 {pr[i]}, {LOG2E}, {pr[i]}")
        e(f"v_exp_f32 {pr[i]}, {pr[i]}")
    nop(1)
    e(f"v_add_f32 {vLs}, {pr[0]}, {pr[1]}")
    e(f"v_add_f32 {vLs}, {pr[2]}, {vLs}")
    e(f"v_add_f32 {vLs}, {pr[3]}, {vLs}")
    nop(1)
    for i in range(4):
        e(f"v_readlane_b32 {st[i]}, {vLs}, {16*i}")
    for i in range(4):
        for g in range(4):
            e(f"v_readlane_b32 s{48+4*i+g}, {pr[i]}, {16*g}")
    e(f"v_mov_b32 {vLs}, {st[0]}")
    for i in range(1, 4):
        e(f"v_add_f32 {vLs}, {st[i]}, {vLs}")
    e("s_waitcnt vmcnt(16)")
    o0, o1 = "v28", "v29"
    for k in range(16):
        e(f"v_lshlrev_b32 {t0}, 16, {vV[k]}")
        e(f"v_and_b32 {t1}, 0xffff0000, {vV[k]}")
        if k == 0:
            e(f"v_mul_f32 {o0}, s{48+k}, {t0}")
            e(f"v_mul_f32 {o1}, s{48+k}, {t1}")
        else:
            e(f"v_fmac_f32 {o0}, s{48+k}, {t0}")
            e(f"v_fmac_f32 {o1}, s{48+k}, {t1}")
    e(f"s_lshl_b32 s12, {S_WAVE}, 9")
    e(f"v_add_u32 {vOff[4]}, s12, v5")
    e(f"ds_write_b64 {vOff[4]}, v[28:29] offset:{OP}")
    e(f"s_lshl_b32 s12, {S_WAVE}, 3")
    e(f"v_mov_b32 {vOff[5]}, s12")
    e(f"ds_write_b64 {vOff[5]}, v[22:23] offset:{ML}")
    e("s_waitcnt lgkmcnt(0)")
    e("s_barrier")
    e(f"s_lshl_b32 s12, {S_WAVE}, 2")
    e(f"v_mov_b32 {vOff[4]}, s12")
    vH = vA[0:8]
    for i in range(8):
        e(f"ds_read_b32 {vH[i]}, {vOff[4]} offset:{W1P+32*i}")
    e("s_waitcnt lgkmcnt(0)")
    hh = "v30"
    e(f"v_add_f32 {hh}, {vH[0]}, {vH[1]}")
    for i in range(2, 8):
        e(f"v_add_f32 {hh}, {vH[i]}, {hh}")
    e(f"v_cvt_pk_bf16_f32 {t0}, {hh}, {hh}")
    e(f"v_and_b32 {hh}, 0xffff0000, {t0}")
    e(f"v_lshlrev_b32 {t1}, 16, {vB1}")
    e(f"v_add_f32 {hh}, {hh}, {t1}")
    e(f"v_cvt_pk_bf16_f32 {t0}, {hh}, {hh}")
    e(f"v_and_b32 {hh}, 0xffff0000, {t0}")
    g1, g2 = "v31", "v32"
    e(f"v_mul_f32 {g1}, {hh}, {hh}")
    e(f"v_mul_f32 {g1}, {g1}, {hh}")
    e(f"v_mul_f32 {g1}, 0x3d372713, {g1}")
    e(f"v_add_f32 {g1}, {hh}, {g1}")
    e(f"v_mul_f32 {g1}, 0x3f4c422a, {g1}")
    e(f"v_mul_f32 {g1}, 0x4038aa3b, {g1}")
    e(f"v_exp_f32 {g1}, {g1}")
    nop(1)
    e(f"v_add_f32 {g1}, 1.0, {g1}")
    e(f"v_rcp_f32 {g1}, {g1}")
    nop(1)
    e(f"v_fma_f32 {g1}, {g1}, -2.0, 1.0")
    e(f"v_add_f32 {g1}, 1.0, {g1}")
    e(f"v_mul_f32 {g1}, 0.5, {g1}")
    e(f"v_mul_f32 {hh}, {hh}, {g1}")
    e(f"v_cvt_pk_bf16_f32 {t0}, {hh}, {hh}")
    e(f"v_and_b32 {hh}, 0xffff0000, {t0}")
    e(f"v_cvt_f32_u32 {g1}, s45")
    e(f"v_mul_f32 {hh}, {hh}, {g1}")
    acc = ["v%d" % i for i in range(34, 44)]
    e("s_waitcnt vmcnt(11)")
    for i in range(5):
        e(f"v_lshlrev_b32 {t0}, 16, {vW2[i]}")
        e(f"v_and_b32 {t1}, 0xffff0000, {vW2[i]}")
        e(f"v_mul_f32 {acc[2*i]}, {hh}, {t0}")
        e(f"v_mul_f32 {acc[2*i+1]}, {hh}, {t1}")
    e("s_barrier")
    e(f"s_lshl_b32 s12, {S_WAVE}, 2")
    e(f"v_mov_b32 {vOff[4]}, s12")
    c0, c1 = "v30", "v31"
    e(f"ds_read_b32 {c0}, {vOff[4]} offset:{CF}")
    e(f"ds_read_b32 {c1}, {vOff[4]} offset:{CF+32}")
    e("s_waitcnt vmcnt(1) lgkmcnt(0)")
    for r in range(2):
        cc = c0 if r == 0 else c1
        for i in range(5):
            e(f"v_lshlrev_b32 {t0}, 16, {vWo[5*r+i]}")
            e(f"v_and_b32 {t1}, 0xffff0000, {vWo[5*r+i]}")
            e(f"v_fmac_f32 {acc[2*i]}, {cc}, {t0}")
            e(f"v_fmac_f32 {acc[2*i+1]}, {cc}, {t1}")
    e(f"s_mul_i32 s12, {S_WAVE}, 2560")
    e(f"v_add_u32 {vOff[4]}, s12, v5")
    for i in range(5):
        e(f"ds_write_b64 {vOff[4]}, v[{34+2*i}:{35+2*i}] offset:{OUTP+512*i}")
    e("s_waitcnt lgkmcnt(0)")
    e("s_barrier")
    e(f"s_cmp_ge_u32 {S_WAVE}, 5")
    e("s_cbranch_scc1 L_end")
    e(f"s_lshl_b32 s12, {S_WAVE}, 9")
    e(f"v_add_u32 {vOff[4]}, s12, v5")
    rr = ["v%d" % i for i in range(64, 80)]
    for i in range(8):
        e(f"ds_read_b64 v[{64+2*i}:{65+2*i}], {vOff[4]} offset:{OUTP+2560*i}")
    e(f"s_lshl_b32 s12, {S_WAVE}, 6")
    e(f"v_add_u32 {vOff[5]}, s12, v1")
    e(f"v_lshrrev_b32 {vOff[6]}, 1, {vOff[5]}")
    e(f"v_lshlrev_b32 {vOff[6]}, 13, {vOff[6]}")
    e(f"v_and_b32 {vOff[5]}, 1, {vOff[5]}")
    e(f"v_lshl_add_u32 {vOff[6]}, {vOff[5]}, 4, {vOff[6]}")
    e(f"s_lshl_b32 s12, {S_WG}, 5")
    e(f"s_add_u32 s12, s12, {FREG}")
    e(f"v_add_u32 {vOff[6]}, s12, {vOff[6]}")
    e("s_waitcnt vmcnt(0) lgkmcnt(0)")
    e(f"v_add_f32 v80, {rr[0]}, {rr[2]}")
    e(f"v_add_f32 v82, {rr[1]}, {rr[3]}")
    for i in range(2, 8):
        e(f"v_add_f32 v80, {rr[2*i]}, v80")
        e(f"v_add_f32 v82, {rr[2*i+1]}, v82")
    e(f"v_add_u32 v81, 1, {vTag}")
    e(f"v_add_u32 v83, 1, {vTag}")
    e(f"global_store_dwordx4 {vOff[6]}, v[80:83], {P_WS} sc1")


def gen_comm():
    st = ["s8", "s9", "s10", "s11"]
    e("v_mov_b32 v6, 0")
    e(f"global_load_dword v7, v6, {P_WS} sc1")
    e(f"s_min_u32 s12, {S_WG}, 159")
    e("s_lshl_b32 s12, s12, 3")
    e("v_mov_b32 v8, s12")
    e(f"global_load_dwordx2 v[10:11], v8, {P_X}")
    e(f"global_load_dwordx2 v[12:13], v8, {P_B2}")
    e(f"s_lshl_b32 s13, {S_H}, 3")
    e(f"s_add_u32 s14, s13, {S_S}")
    e("s_waitcnt vmcnt(0)")
    e("v_add_u32 v7, 1, v7")
    nop(1)
    e("v_readfirstlane_b32 s46, v7")
    e("s_barrier")
    for i in range(8):
        e(f"ds_read_b64 v[{20+2*i}:{21+2*i}], v5 offset:{QP+512*i}")
    e("s_lshl_b32 s15, s14, 10")
    e(f"s_add_u32 s15, s15, {QREG}")
    e("v_add_u32 v9, s15, v4")
    e("s_waitcnt lgkmcnt(0)")
    e("v_add_f32 v16, v20, v22")
    e("v_add_f32 v18, v21, v23")
    for i in range(2, 8):
        e(f"v_add_f32 v16, v{20+2*i}, v16")
        e(f"v_add_f32 v18, v{21+2*i}, v18")
    e("v_mov_b32 v17, s46")
    e("v_mov_b32 v19, s46")
    e(f"global_store_dwordx4 v9, v[16:19], {P_WS} sc1")
    e("s_lshl_b32 s15, s13, 10")
    e(f"s_add_u32 s15, s15, {QREG}")
    e("v_add_u32 v9, s15, v4")
    e("v_add_u32 v14, 0x1000, v9")
    e(f"s_mov_b32 s47, {SPIN}")
    e("L_pollq:")
    for n in range(8):
        base = "v9" if n < 4 else "v14"
        e(f"global_load_dwordx4 v[{20+4*n}:{23+4*n}], {base}, {P_WS} offset:{1024*(n%4)} sc1")
    e("s_waitcnt vmcnt(0)")
    e("v_xor_b32 v15, s46, v21")
    for n in range(8):
        for k in (1, 3):
            if n == 0 and k == 1:
                continue
            e(f"v_xor_b32 v16, s46, v{20+4*n+k}")
            e("v_or_b32 v15, v15, v16")
    poll_tail("L_pollq", "v15", "s47")
    e("v_add_f32 v16, v20, v24")
    e("v_add_f32 v17, v22, v26")
    for n in range(2, 8):
        e(f"v_add_f32 v16, v{20+4*n}, v16")
        e(f"v_add_f32 v17, v{22+4*n}, v17")
    e("v_cvt_pk_bf16_f32 v16, v16, v17")
    e(f"ds_write_b32 v3, v16 offset:{QL}")
    e("s_waitcnt lgkmcnt(0)")
    e("s_barrier")
    e("s_barrier")
    for i in range(8):
        e(f"ds_read_b64 v[{20+2*i}:{21+2*i}], v5 offset:{OP+512*i}")
    e("v_mov_b32 v6, 0")
    for i in range(8):
        e(f"ds_read_b64 v[{40+2*i}:{41+2*i}], v6 offset:{ML+8*i}")
    e("s_waitcnt lgkmcnt(0)")
    e("v_max3_f32 v16, v40, v42, v44")
    e("v_max3_f32 v16, v16, v46, v48")
    e("v_max3_f32 v16, v16, v50, v52")
    e("v_max_f32 v16, v16, v54")
    for i in range(8):
        e(f"v_sub_f32 v{40+2*i}, v{40+2*i}, v16")
        e(f"v_mul_f32 v{40+2*i}, {LOG2E}, v{40+2*i}")
        e(f"v_exp_f32 v{40+2*i}, v{40+2*i}")
    nop(1)
    e("v_mul_f32 v17, v40, v41")
    e("v_mul_f32 v60, v40, v20")
    e("v_mul_f32 v62, v40, v21")
    for i in range(1, 8):
        e(f"v_fmac_f32 v17, v{40+2*i}, v{41+2*i}")
        e(f"v_fmac_f32 v60, v{40+2*i}, v{20+2*i}")
        e(f"v_fmac_f32 v62, v{40+2*i}, v{21+2*i}")
    e("v_mov_b32 v61, s46")
    e("v_mov_b32 v63, s46")
    e("s_lshl_b32 s15, s14, 11")
    e(f"s_add_u32 s15, s15, {OREG}")
    e("v_add_u32 v9, s15, v4")
    e(f"global_store_dwordx4 v9, v[60:63], {P_WS} offset:64 sc1")
    e("v_mov_b32 v56, v16")
    e("v_mov_b32 v57, s46")
    e("v_mov_b32 v58, v17")
    e("v_mov_b32 v59, s46")
    e("v_mov_b32 v8, s15")
    e("s_mov_b64 s[62:63], exec")
    e("s_mov_b64 exec, 1")
    e(f"global_store_dwordx4 v8, v[56:59], {P_WS} sc1")
    e("s_mov_b64 exec, s[62:63]")
    e("s_lshl_b32 s15, s13, 11")
    e(f"s_add_u32 s15, s15, {OREG}")
    e("v_mov_b32 v8, s15")
    e("v_and_b32 v9, 15, v1")
    e("v_lshlrev_b32 v9, 3, v9")
    e(f"s_lshl_b32 s12, {S_S}, 7")
    e("s_add_u32 s12, s12, s15")
    e("v_add_u32 v9, s12, v9")
    for k in range(1, 4):
        e(f"v_add_u32 v{70+k}, {4096*k}, v8")
        e(f"v_add_u32 v{74+k}, {4096*k}, v9")
    e(f"s_mov_b32 s47, {SPIN}")
    e("L_pollo:")
    for n in range(8):
        b0 = "v8" if n < 2 else f"v{70+n//2}"
        b1 = "v9" if n < 2 else f"v{74+n//2}"
        e(f"global_load_dwordx4 v[{20+4*n}:{23+4*n}], {b0}, {P_WS} offset:{2048*(n%2)} sc1")
        e(f"global_load_dwordx2 v[{52+2*n}:{53+2*n}], {b1}, {P_WS} offset:{2048*(n%2)+64} sc1")
    e("s_waitcnt vmcnt(0)")
    e("v_xor_b32 v16, s46, v21")
    for n in range(8):
        regs = [21+4*n, 23+4*n, 53+2*n]
        for r in regs:
            if r == 21:
                continue
            e(f"v_xor_b32 v17, s46, v{r}")
            e("v_or_b32 v16, v16, v17")
    poll_tail("L_pollo", "v16", "s47")
    e("v_max3_f32 v16, v20, v24, v28")
    e("v_max3_f32 v16, v16, v32, v36")
    e("v_max3_f32 v16, v16, v40, v44")
    e("v_max_f32 v16, v16, v48")
    for n in range(8):
        e(f"v_sub_f32 v{20+4*n}, v{20+4*n}, v16")
        e(f"v_mul_f32 v{20+4*n}, {LOG2E}, v{20+4*n}")
        e(f"v_exp_f32 v{20+4*n}, v{20+4*n}")
    nop(1)
    e("v_mul_f32 v17, v20, v22")
    e("v_mul_f32 v18, v20, v52")
    for n in range(1, 8):
        e(f"v_fmac_f32 v17, v{20+4*n}, v{22+4*n}")
        e(f"v_fmac_f32 v18, v{20+4*n}, v{52+2*n}")
    e("v_rcp_f32 v17, v17")
    nop(1)
    e("v_mul_f32 v18, v18, v17")
    e("v_cvt_pk_bf16_f32 v18, v18, v18")
    e("v_and_b32 v18, 0xffff0000, v18")
    e("v_and_b32 v9, 15, v1")
    e("v_lshlrev_b32 v9, 2, v9")
    e(f"ds_write_b32 v9, v18 offset:{CF}")
    e("s_waitcnt lgkmcnt(0)")
    e("s_barrier")
    e("s_barrier")
    e(f"s_cmp_ge_u32 {S_WG}, 160")
    e("s_cbranch_scc1 L_end")
    e(f"s_lshl_b32 s15, {S_WG}, 13")
    e(f"s_add_u32 s15, s15, {FREG}")
    e("v_add_u32 v9, s15, v4")
    e("v_add_u32 v14, 0x1000, v9")
    e(f"s_mov_b32 s47, {SPIN}")
    e("L_pollf:")
    for n in range(8):
        base = "v9" if n < 4 else "v14"
        e(f"global_load_dwordx4 v[{20+4*n}:{23+4*n}], {base}, {P_WS} offset:{1024*(n%4)} sc1")
    e("s_waitcnt vmcnt(0)")
    e("v_xor_b32 v15, s46, v21")
    for n in range(8):
        for k in (1, 3):
            if n == 0 and k == 1:
                continue
            e(f"v_xor_b32 v16, s46, v{20+4*n+k}")
            e("v_or_b32 v15, v15, v16")
    poll_tail("L_pollf", "v15", "s47")
    e("v_add_f32 v16, v20, v24")
    e("v_add_f32 v17, v22, v26")
    for n in range(2, 8):
        e(f"v_add_f32 v16, v{20+4*n}, v16")
        e(f"v_add_f32 v17, v{22+4*n}, v17")
    for mod in ("row_ror:2", "row_ror:4", "row_ror:8"):
        nop(2)
        e(f"v_add_f32_dpp v16, v16, v16 {mod} row_mask:0xf bank_mask:0xf")
        e(f"v_add_f32_dpp v17, v17, v17 {mod} row_mask:0xf bank_mask:0xf")
    nop(1)
    for r in range(4):
        for p in range(2):
            e(f"v_readlane_b32 s{48+4*r+2*p}, v16, {16*r+p}")
            e(f"v_readlane_b32 s{49+4*r+2*p}, v17, {16*r+p}")
    nop(2)
    for c in range(4):
        e(f"v_mov_b32 v{20+c}, s{48+c}")
        for r in range(1, 4):
            e(f"v_add_f32 v{20+c}, s{48+4*r+c}, v{20+c}")
    e("v_lshlrev_b32 v24, 16, v10")
    e("v_and_b32 v25, 0xffff0000, v10")
    e("v_lshlrev_b32 v26, 16, v11")
    e("v_and_b32 v27, 0xffff0000, v11")
    e("v_lshlrev_b32 v28, 16, v12")
    e("v_and_b32 v29, 0xffff0000, v12")
    e("v_lshlrev_b32 v30, 16, v13")
    e("v_and_b32 v31, 0xffff0000, v13")
    for c in range(4):
        e(f"v_add_f32 v{20+c}, v{20+c}, v{28+c}")
        e(f"v_add_f32 v{20+c}, v{20+c}, v{24+c}")
    e("v_cvt_pk_bf16_f32 v32, v20, v21")
    e("v_cvt_pk_bf16_f32 v33, v22, v23")
    e(f"s_lshl_b32 s12, {S_WG}, 3")
    e("v_mov_b32 v8, s12")
    e("s_mov_b64 exec, 1")
    e(f"global_store_dwordx2 v8, v[32:33], {P_OUT}")
    e(f"s_cmp_lg_u32 {S_WG}, 0")
    e("s_cbranch_scc1 L_end")
    e("v_mov_b32 v6, 0")
    e("v_mov_b32 v7, s46")
    e(f"global_store_dword v6, v7, {P_WS} sc1")


def main():
    gen()
    out = HEADER
    out += "; @launch grid=(256,1,1) block=(576,1,1) lds=%d\n" % LDS_BYTES
    out += '.amdgcn_target "amdgcn-amd-amdhsa--gfx950"\n.text\n'
    out += f".globl {KN}\n.p2align 8\n.type {KN},@function\n{KN}:\n"
    out += "\n".join(L) + "\n    s_endpgm\n"
    out += f""".section .rodata,"a"
.p2align 6
.amdhsa_kernel {KN}
  .amdhsa_next_free_vgpr 128
  .amdhsa_next_free_sgpr 64
  .amdhsa_accum_offset 128
  .amdhsa_group_segment_fixed_size 0
  .amdhsa_kernarg_size 104
  .amdhsa_user_sgpr_count 2
  .amdhsa_user_sgpr_kernarg_segment_ptr 1
  .amdhsa_system_sgpr_workgroup_id_x 1
.end_amdhsa_kernel
"""
    open(sys.argv[1], "w").write(out)


main()
```

```python
import sys, os

NAME = "parallel_sum__sliding_block_cached__mixer_channel_mlp__decode"
KN = NAME + "_kernel"
HEADER = open("cdna_kernels/%s.s.ref" % NAME).read().split("; Override launch geometry")[0]

W_INFLIGHT = int(os.environ.get("WIN", "24"))
STAMPS = int(os.environ.get("STAMPS", "0"))
SPIN = 400000

XN = 0
YF = 2560
QP = 5120
QL = 9216
OP = 9472
ML = 13568
CF = 13632
W1P = 13696
SYNC = 13952
CNTA, FLAGB, CNTC, FLAGD, CNTE, PROG = [SYNC + 4*i for i in range(6)]
OUTP = 14080
KL = 34816
VL = KL + 32768
W1L = VL + 32768
W2L = W1L + 10240
WOL = W2L + 10240
LDS_BYTES = WOL + 20480

NCH_K, NCH_V, NCH_W1, NCH_W2, NCH_WO = 32, 32, 10, 10, 20
P_Kdone = lambda w: 4*w + 4
P_Vdone = lambda w: 32 + 4*w + 4
TH_W1 = 74
TH_W2 = 84
TH_WO = 104

QREG = 0x1000
OREG = 0x80000
FREG = 0x100000

L = []
def e(s=""):
    L.append("    " + s if s and not s.endswith(":") else s)
def nop(n):
    while n > 0:
        k = min(n, 16)
        e("s_nop %d" % (k - 1))
        n -= k

S_WG, S_WAVE, S_H, S_S = "s2", "s3", "s4", "s5"
P_X, P_K, P_V, P_WQ, P_WO, P_W1, P_B1, P_W2, P_B2, P_OUT, P_DBG, P_WS = (
    "s[16:17]", "s[18:19]", "s[20:21]", "s[22:23]", "s[24:25]", "s[28:29]", "s[30:31]",
    "s[32:33]", "s[34:35]", "s[36:37]", "s[38:39]", "s[40:41]")
LOG2E = "0x3fb8aa3b"
SCALE = "0x3db504f3"
INV640 = "0x3acccccd"
EPS = "0x3727c5ac"

_sc = [0]
def stamp():
    if not STAMPS:
        return
    i = _sc[0]; _sc[0] += 1
    assert i < 16
    e(f"s_memrealtime s[{64+2*i}:{65+2*i}]")
def stamp_flush():
    n = _sc[0]; _sc[0] = 0
    if not STAMPS:
        return
    e("s_mov_b64 exec, 1")
    e("s_waitcnt lgkmcnt(0)")
    e(f"s_mul_i32 s12, {S_WG}, 10")
    e(f"s_add_u32 s12, s12, {S_WAVE}")
    e("s_lshl_b32 s12, s12, 7")
    e("s_add_u32 s12, s12, 0x800000")
    e("v_mov_b32 v126, s12")
    for i in range(n):
        e(f"v_mov_b32 v127, s{64+2*i}")
        e(f"global_store_dword v126, v127, {P_WS} offset:{4*i}")
        e("s_nop 1")

_lbl = [0]
def lds_wait(addr, thresh, vz="v6", vt="v7", st="s12"):
    n = _lbl[0]; _lbl[0] += 1
    lab = f"L_lw{n}"
    e(f"{lab}:")
    e(f"ds_read_b32 {vt}, {vz} offset:{addr}")
    e("s_waitcnt lgkmcnt(0)")
    e(f"v_readfirstlane_b32 {st}, {vt}")
    e(f"s_cmp_ge_u32 {st}, {thresh}")
    e(f"s_cbranch_scc1 {lab}_d")
    e("s_sleep 1")
    e(f"s_branch {lab}")
    e(f"{lab}_d:")

def lds_arrive(addr, vz="v6", vone="v8"):
    e("s_mov_b64 exec, 1")
    e(f"ds_add_u32 {vz}, {vone} offset:{addr}")
    e("s_mov_b64 exec, -1")

def lds_set(addr, vz="v6", vone="v8"):
    e("s_mov_b64 exec, 1")
    e(f"ds_write_b32 {vz}, {vone} offset:{addr}")
    e("s_mov_b64 exec, -1")

def allreduce_sum(v, stmp):
    for mod in ("quad_perm:[1,0,3,2]", "quad_perm:[2,3,0,1]", "row_half_mirror", "row_mirror"):
        nop(2)
        e(f"v_add_f32_dpp {v}, {v}, {v} {mod} row_mask:0xf bank_mask:0xf")
    nop(1)
    for i in range(4):
        e(f"v_readlane_b32 {stmp[i]}, {v}, {16*i}")
    nop(2)
    e(f"v_mov_b32 {v}, {stmp[0]}")
    for i in range(1, 4):
        e(f"v_add_f32 {v}, {stmp[i]}, {v}")

def layernorm(a, out, t, stmp):
    vs, vm, vv, vp, vmb, vr, vq = t[0:7]
    e(f"v_add_f32 {vs}, {a[0]}, {a[1]}")
    for i in range(2, 10):
        e(f"v_add_f32 {vs}, {a[i]}, {vs}")
    allreduce_sum(vs, stmp)
    e(f"v_mul_f32 {vm}, {INV640}, {vs}")
    e(f"v_sub_f32 {vq}, {a[0]}, {vm}")
    e(f"v_mul_f32 {vv}, {vq}, {vq}")
    for i in range(1, 10):
        e(f"v_sub_f32 {vq}, {a[i]}, {vm}")
        e(f"v_fmac_f32 {vv}, {vq}, {vq}")
    allreduce_sum(vv, stmp)
    e(f"v_mul_f32 {vv}, {INV640}, {vv}")
    e(f"v_cvt_pk_bf16_f32 {vp}, {vm}, {vv}")
    e(f"v_lshlrev_b32 {vmb}, 16, {vp}")
    e(f"v_and_b32 {vv}, 0xffff0000, {vp}")
    e(f"v_add_f32 {vv}, {EPS}, {vv}")
    e(f"v_cvt_pk_bf16_f32 {vp}, {vv}, {vv}")
    e(f"v_and_b32 {vv}, 0xffff0000, {vp}")
    e(f"v_sqrt_f32 {vv}, {vv}")
    nop(1)
    e(f"v_cvt_pk_bf16_f32 {vp}, {vv}, {vv}")
    e(f"v_and_b32 {vv}, 0xffff0000, {vp}")
    e(f"v_rcp_f32 {vr}, {vv}")
    for i in range(5):
        lo, hi = a[2*i], a[2*i+1]
        olo, ohi = out[2*i], out[2*i+1]
        e(f"v_sub_f32 {olo}, {lo}, {vmb}")
        e(f"v_sub_f32 {ohi}, {hi}, {vmb}")
        e(f"v_cvt_pk_bf16_f32 {vp}, {olo}, {ohi}")
        e(f"v_lshlrev_b32 {olo}, 16, {vp}")
        e(f"v_and_b32 {ohi}, 0xffff0000, {vp}")
        e(f"v_mul_f32 {olo}, {olo}, {vr}")
        e(f"v_mul_f32 {ohi}, {ohi}, {vr}")
        e(f"v_cvt_pk_bf16_f32 {vp}, {olo}, {ohi}")
        e(f"v_lshlrev_b32 {olo}, 16, {vp}")
        e(f"v_and_b32 {ohi}, 0xffff0000, {vp}")

def poll_tail(label, vbad, scnt):
    e(f"v_cmp_ne_u32 vcc, 0, {vbad}")
    e(f"s_cbranch_vccz {label}_done")
    e(f"s_sub_u32 {scnt}, {scnt}, 1")
    e(f"s_cmp_eq_u32 {scnt}, 0")
    e(f"s_cbranch_scc1 {label}_done")
    e(f"s_branch {label}")
    e(f"{label}_done:")

def mlp_map():
    e(f"s_and_b32 s42, {S_WG}, 7")
    e(f"s_lshr_b32 s43, {S_WG}, 3")
    e("s_lshr_b32 s44, s43, 3")
    e("s_lshl_b32 s44, s44, 3")
    e("s_add_u32 s42, s42, s44")
    e("s_and_b32 s43, s43, 7")
    e("s_cmp_lt_u32 s42, 27")
    e("s_cselect_b32 s45, 1, 0")
    e("s_lshl_b32 s42, s42, 3")
    e("s_add_u32 s42, s42, s43")
    e("s_cmp_eq_u32 s45, 1")
    e("s_cselect_b32 s42, s42, 0")

def gen():
    e(f"s_cmp_ge_u32 {S_WG}, 256")
    e("s_cbranch_scc1 L_end")
    e("s_load_dwordx16 s[16:31], s[0:1], 0")
    e("s_load_dwordx8 s[32:39], s[0:1], 64")
    e("s_load_dwordx2 s[40:41], s[0:1], 96")
    e("v_lshrrev_b32 v2, 6, v0")
    e("v_and_b32 v1, 63, v0")
    e(f"s_and_b32 {S_H}, {S_WG}, 31")
    e(f"v_readfirstlane_b32 {S_WAVE}, v2")
    e(f"s_lshr_b32 {S_S}, {S_WG}, 5")
    e("v_lshlrev_b32 v3, 2, v1")
    e("v_lshlrev_b32 v4, 4, v1")
    e("v_lshlrev_b32 v5, 3, v1")
    e("v_mov_b32 v6, 0")
    e("v_mov_b32 v8, 1")
    e("s_waitcnt lgkmcnt(0)")
    e(f"s_cmp_eq_u32 {S_WAVE}, 8")
    e("s_cbranch_scc1 L_comm")
    e(f"s_cmp_eq_u32 {S_WAVE}, 9")
    e("s_cbranch_scc1 L_loader")
    gen_data()
    e("L_dflush:")
    stamp(); stamp_flush()
    e("s_branch L_end")
    e("L_comm:")
    gen_comm()
    e("L_cflush:")
    stamp(); stamp_flush()
    e("s_branch L_end")
    e("L_loader:")
    gen_loader()
    stamp(); stamp_flush()
    e("L_end:")

def gen_loader():
    stamp()
    mlp_map()
    e(f"s_lshl_b32 s13, {S_H}, 20")
    e(f"s_lshl_b32 s14, {S_S}, 15")
    e("s_add_u32 s13, s13, s14")
    e(f"s_add_u32 s13, s13, {3072*256}")
    e("v_add_u32 v10, s13, v4")
    chunks = []
    for c in range(NCH_K): chunks.append(("K", c))
    for c in range(NCH_V): chunks.append(("V", c))
    for c in range(NCH_W1): chunks.append(("W1", c))
    for c in range(NCH_W2): chunks.append(("W2", c))
    for c in range(NCH_WO): chunks.append(("WO", c))
    first_barrier_done = False
    for idx, (kind, c) in enumerate(chunks):
        if kind == "K":
            ptr, ldsb = P_K, KL
            if c: e("v_add_u32 v10, 1024, v10")
        elif kind == "V":
            ptr, ldsb = P_V, VL
            if c == 0: e("v_add_u32 v10, s13, v4")
            else: e("v_add_u32 v10, 1024, v10")
        elif kind == "W1":
            ptr, ldsb = P_W1, W1L
            if c == 0:
                e("s_mov_b32 s14, 3456")
                e("v_mul_lo_u32 v10, v1, s14")
                e("s_lshl_b32 s14, s42, 4")
                e("v_add_u32 v10, s14, v10")
            else:
                e(f"v_add_u32 v10, {64*3456}, v10")
        elif kind == "W2":
            ptr, ldsb = P_W2, W2L
            if c == 0:
                e("s_mul_i32 s14, s42, 10240")
                e("v_add_u32 v10, s14, v4")
            else: e("v_add_u32 v10, 1024, v10")
        else:
            ptr, ldsb = P_WO, WOL
            if c == 0:
                e(f"s_lshl_b32 s14, {S_H}, 7")
                e(f"s_lshl_b32 s15, {S_S}, 4")
                e("s_add_u32 s14, s14, s15")
                e("s_mul_i32 s14, s14, 1280")
                e("v_add_u32 v10, s14, v4")
            else: e("v_add_u32 v10, 1024, v10")
        e(f"s_mov_b32 m0, {ldsb + 1024*c}")
        if idx >= W_INFLIGHT:
            if not first_barrier_done:
                e("s_barrier")
                first_barrier_done = True
            e(f"s_waitcnt vmcnt({W_INFLIGHT-1})")
            e(f"v_mov_b32 v11, {idx - W_INFLIGHT + 1}")
            e(f"ds_write_b32 v6, v11 offset:{PROG}")
        else:
            e("s_nop 0")
        e(f"global_load_lds_dwordx4 v10, {ptr} nt")
    n = len(chunks)
    for k in range(W_INFLIGHT - 1, -1, -1):
        e(f"s_waitcnt vmcnt({k})")
        e(f"v_mov_b32 v11, {n - k}")
        e(f"ds_write_b32 v6, v11 offset:{PROG}")
    e("s_waitcnt lgkmcnt(0)")

def gen_data():
    vX = ["v%d" % i for i in range(10, 15)]
    vA = ["v%d" % i for i in range(16, 26)]
    vN = ["v%d" % i for i in range(26, 36)]
    vY = ["v%d" % i for i in range(36, 46)]
    vT = ["v%d" % i for i in range(46, 54)]
    vWq = ["v%d" % i for i in range(54, 64)]
    vK = ["v%d" % i for i in range(64, 80)]
    vV = ["v%d" % i for i in range(80, 96)]
    vW1 = ["v%d" % i for i in range(96, 101)]
    vB1 = "v101"
    vW2 = ["v%d" % i for i in range(102, 107)]
    vWo = ["v%d" % i for i in range(108, 118)]
    vTag = "v118"
    vOff = ["v%d" % i for i in range(120, 126)]
    st = ["s8", "s9", "s10", "s11"]
    t0, t1 = vT[2], vT[3]
    stamp()
    e(f"s_mul_i32 s6, {S_S}, 80")
    e(f"s_add_u32 s6, s6, {S_WAVE}")
    e("s_lshl_b32 s7, s6, 13")
    e(f"s_lshl_b32 s12, {S_H}, 8")
    e("s_add_u32 s7, s7, s12")
    for i in range(5):
        e(f"global_load_dword {vX[i]}, v3, {P_X} offset:{256*i}")
    e(f"v_add_u32 {vOff[0]}, s7, v3")
    for i in range(10):
        if i:
            e(f"v_add_u32 {vOff[0]}, 0x10000, {vOff[0]}")
        e(f"global_load_dword {vWq[i]}, {vOff[0]}, {P_WQ} nt")
    mlp_map()
    e("s_lshl_b32 s12, s42, 3")
    e(f"s_add_u32 s12, s12, {S_WAVE}")
    e("s_lshl_b32 s14, s12, 1")
    e(f"v_mov_b32 {vOff[4]}, s14")
    e(f"global_load_ushort {vB1}, {vOff[4]}, {P_B1}")
    e(f"global_load_dword {vTag}, v6, {P_WS} sc1")
    e("s_barrier")
    e("s_waitcnt vmcnt(12)")
    stamp()
    for i in range(5):
        e(f"v_lshlrev_b32 {vA[2*i]}, 16, {vX[i]}")
        e(f"v_and_b32 {vA[2*i+1]}, 0xffff0000, {vX[i]}")
    layernorm(vA, vN, vT, st)
    for i in range(5):
        e(f"ds_write_b64 v5, v[{26+2*i}:{27+2*i}] offset:{XN+512*i}")
    e("s_lshl_b32 s12, s6, 2")
    e(f"v_mov_b32 {vOff[2]}, s12")
    e("s_waitcnt lgkmcnt(0)")
    vC = vA
    for i in range(10):
        e(f"ds_read_b32 {vC[i]}, {vOff[2]} offset:{XN+32*i}")
    stamp()
    e("s_waitcnt vmcnt(2) lgkmcnt(0)")
    stamp()
    q0, q1 = vT[0], vT[1]
    for i in range(10):
        e(f"v_lshlrev_b32 {t0}, 16, {vWq[i]}")
        e(f"v_and_b32 {t1}, 0xffff0000, {vWq[i]}")
        if i == 0:
            e(f"v_mul_f32 {q0}, {vC[i]}, {t0}")
            e(f"v_mul_f32 {q1}, {vC[i]}, {t1}")
        else:
            e(f"v_fmac_f32 {q0}, {vC[i]}, {t0}")
            e(f"v_fmac_f32 {q1}, {vC[i]}, {t1}")
    e(f"s_lshl_b32 s12, {S_WAVE}, 9")
    e(f"v_add_u32 {vOff[2]}, s12, v5")
    e(f"ds_write_b64 {vOff[2]}, v[{vT[0][1:]}:{vT[1][1:]}] offset:{QP}")
    e("s_waitcnt lgkmcnt(0)")
    lds_arrive(CNTA)
    stamp()
    layernorm(vN, vY, vT, st)
    for i in range(5):
        e(f"ds_write_b64 v5, v[{36+2*i}:{37+2*i}] offset:{YF+512*i}")
    lds_wait(FLAGB, 1)
    stamp()
    vQ = ["v%d" % i for i in range(46, 50)]
    e(f"v_and_b32 {vOff[4]}, 15, v1")
    e(f"v_lshlrev_b32 {vOff[4]}, 4, {vOff[4]}")
    e(f"ds_read_b128 v[46:49], {vOff[4]} offset:{QL}")
    e(f"s_lshl_b32 s14, {S_WAVE}, 2")
    e("s_add_u32 s14, s14, 4")
    lds_wait(PROG, "s14")
    e(f"s_lshl_b32 s12, {S_WAVE}, 12")
    e(f"v_add_u32 {vOff[4]}, s12, v4")
    for i in range(4):
        e(f"ds_read_b128 v[{64+4*i}:{67+4*i}], {vOff[4]} offset:{KL+1024*i}")
    e("s_waitcnt lgkmcnt(0)")
    sc = ["v%d" % i for i in range(16, 20)]
    for j in range(4):
        for i in range(4):
            c = "0" if j == 0 else sc[i]
            e(f"v_dot2_f32_bf16 {sc[i]}, {vK[4*i+j]}, {vQ[j]}, {c}")
    nop(3)
    for mod in ("quad_perm:[1,0,3,2]", "quad_perm:[2,3,0,1]", "row_half_mirror", "row_mirror"):
        for i in range(4):
            e(f"v_add_f32_dpp {sc[i]}, {sc[i]}, {sc[i]} {mod} row_mask:0xf bank_mask:0xf")
    p01, p23 = "v20", "v21"
    e(f"v_cvt_pk_bf16_f32 {p01}, {sc[0]}, {sc[1]}")
    e(f"v_cvt_pk_bf16_f32 {p23}, {sc[2]}, {sc[3]}")
    e(f"v_lshlrev_b32 {sc[0]}, 16, {p01}")
    e(f"v_and_b32 {sc[1]}, 0xffff0000, {p01}")
    e(f"v_lshlrev_b32 {sc[2]}, 16, {p23}")
    e(f"v_and_b32 {sc[3]}, 0xffff0000, {p23}")
    for i in range(4):
        e(f"v_mul_f32 {sc[i]}, {SCALE}, {sc[i]}")
    e(f"v_cvt_pk_bf16_f32 {p01}, {sc[0]}, {sc[1]}")
    e(f"v_cvt_pk_bf16_f32 {p23}, {sc[2]}, {sc[3]}")
    e(f"v_lshlrev_b32 {sc[0]}, 16, {p01}")
    e(f"v_and_b32 {sc[1]}, 0xffff0000, {p01}")
    e(f"v_lshlrev_b32 {sc[2]}, 16, {p23}")
    e(f"v_and_b32 {sc[3]}, 0xffff0000, {p23}")
    vM, vLs = "v22", "v23"
    e(f"v_max3_f32 {vM}, {sc[0]}, {sc[1]}, {sc[2]}")
    e(f"v_max_f32 {vM}, {vM}, {sc[3]}")
    nop(1)
    for i in range(4):
        e(f"v_readlane_b32 {st[i]}, {vM}, {16*i}")
    nop(2)
    e(f"v_mov_b32 {vM}, {st[0]}")
    for i in range(1, 4):
        e(f"v_max_f32 {vM}, {st[i]}, {vM}")
    pr = ["v%d" % i for i in range(24, 28)]
    for i in range(4):
        e(f"v_sub_f32 {pr[i]}, {sc[i]}, {vM}")
        e(f"v_mul_f32 {pr[i]}, {LOG2E}, {pr[i]}")
        e(f"v_exp_f32 {pr[i]}, {pr[i]}")
    nop(1)
    e(f"v_add_f32 {vLs}, {pr[0]}, {pr[1]}")
    e(f"v_add_f32 {vLs}, {pr[2]}, {vLs}")
    e(f"v_add_f32 {vLs}, {pr[3]}, {vLs}")
    nop(1)
    for i in range(4):
        e(f"v_readlane_b32 {st[i]}, {vLs}, {16*i}")
    for i in range(4):
        for g in range(4):
            e(f"v_readlane_b32 s{48+4*i+g}, {pr[i]}, {16*g}")
    e(f"v_mov_b32 {vLs}, {st[0]}")
    for i in range(1, 4):
        e(f"v_add_f32 {vLs}, {st[i]}, {vLs}")
    stamp()
    e(f"s_lshl_b32 s14, {S_WAVE}, 2")
    e("s_add_u32 s14, s14, 36")
    lds_wait(PROG, "s14")
    e(f"s_lshl_b32 s12, {S_WAVE}, 12")
    e(f"s_add_u32 s12, s12, {VL}")
    e(f"v_add_u32 {vOff[4]}, s12, v3")
    for k in range(16):
        e(f"ds_read_b32 {vV[k]}, {vOff[4]} offset:{256*k}")
    stamp()
    o0, o1 = "v28", "v29"
    for k in range(16):
        if k % 4 == 0:
            e(f"s_waitcnt lgkmcnt({12-k})")
        e(f"v_lshlrev_b32 {t0}, 16, {vV[k]}")
        e(f"v_and_b32 {t1}, 0xffff0000, {vV[k]}")
        if k == 0:
            e(f"v_mul_f32 {o0}, s{48+k}, {t0}")
            e(f"v_mul_f32 {o1}, s{48+k}, {t1}")
        else:
            e(f"v_fmac_f32 {o0}, s{48+k}, {t0}")
            e(f"v_fmac_f32 {o1}, s{48+k}, {t1}")
    e(f"s_lshl_b32 s12, {S_WAVE}, 9")
    e(f"v_add_u32 {vOff[4]}, s12, v5")
    e(f"ds_write_b64 {vOff[4]}, v[28:29] offset:{OP}")
    e(f"s_lshl_b32 s12, {S_WAVE}, 3")
    e(f"v_mov_b32 {vOff[5]}, s12")
    e(f"ds_write_b64 {vOff[5]}, v[22:23] offset:{ML}")
    e("s_waitcnt lgkmcnt(0)")
    lds_arrive(CNTC)
    stamp()
    lds_wait(PROG, TH_W1)
    e(f"v_lshrrev_b32 {vOff[4]}, 2, v1")
    e(f"v_lshlrev_b32 {vOff[4]}, 2, {vOff[4]}")
    e(f"s_mul_i32 s14, {S_WAVE}, 320")
    e(f"v_add_u32 {vOff[4]}, s14, {vOff[4]}")
    vYc = vA[0:5]
    for i in range(5):
        e(f"ds_read_b32 {vYc[i]}, {vOff[4]} offset:{YF+64*i}")
    e(f"s_mul_i32 s14, {S_WAVE}, 1280")
    e(f"s_add_u32 s14, s14, {W1L}")
    e(f"v_add_u32 {vOff[5]}, s14, v3")
    for i in range(5):
        e(f"ds_read_b32 {vW1[i]}, {vOff[5]} offset:{256*i}")
    e("s_waitcnt lgkmcnt(0)")
    a0, a1 = vT[0], vT[1]
    for i in range(5):
        e(f"v_lshlrev_b32 {t0}, 16, {vW1[i]}")
        e(f"v_and_b32 {t1}, 0xffff0000, {vW1[i]}")
        if i == 0:
            e(f"v_mul_f32 {a0}, {vYc[i]}, {t0}")
            e(f"v_mul_f32 {a1}, {vYc[i]}, {t1}")
        else:
            e(f"v_fmac_f32 {a0}, {vYc[i]}, {t0}")
            e(f"v_fmac_f32 {a1}, {vYc[i]}, {t1}")
    for mod in ("row_ror:4", "row_ror:8"):
        nop(2)
        e(f"v_add_f32_dpp {a0}, {a0}, {a0} {mod} row_mask:0xf bank_mask:0xf")
        e(f"v_add_f32_dpp {a1}, {a1}, {a1} {mod} row_mask:0xf bank_mask:0xf")
    e(f"v_xor_b32 {vOff[4]}, 16, v1")
    e(f"v_lshlrev_b32 {vOff[4]}, 2, {vOff[4]}")
    e(f"v_xor_b32 {vOff[3]}, 32, v1")
    e(f"v_lshlrev_b32 {vOff[3]}, 2, {vOff[3]}")
    for va in (vOff[4], vOff[3]):
        e(f"ds_bpermute_b32 {t0}, {va}, {a0}")
        e(f"ds_bpermute_b32 {t1}, {va}, {a1}")
        e("s_waitcnt lgkmcnt(0)")
        e(f"v_add_f32 {a0}, {a0}, {t0}")
        e(f"v_add_f32 {a1}, {a1}, {t1}")
    e(f"v_and_b32 {vOff[4]}, 3, v1")
    e(f"v_lshlrev_b32 {vOff[4]}, 3, {vOff[4]}")
    e(f"s_lshl_b32 s14, {S_WAVE}, 5")
    e(f"v_add_u32 {vOff[4]}, s14, {vOff[4]}")
    e(f"ds_write_b64 {vOff[4]}, v[{a0[1:]}:{a1[1:]}] offset:{W1P}")
    e("s_waitcnt lgkmcnt(0)")
    lds_arrive(CNTE)
    lds_wait(CNTE, 8)
    e(f"s_lshl_b32 s12, {S_WAVE}, 2")
    e(f"v_mov_b32 {vOff[4]}, s12")
    vH = vA[0:8]
    for i in range(8):
        e(f"ds_read_b32 {vH[i]}, {vOff[4]} offset:{W1P+32*i}")
    e("s_waitcnt vmcnt(0) lgkmcnt(0)")
    hh = "v30"
    e(f"v_add_f32 {hh}, {vH[0]}, {vH[1]}")
    for i in range(2, 8):
        e(f"v_add_f32 {hh}, {vH[i]}, {hh}")
    e(f"v_cvt_pk_bf16_f32 {t0}, {hh}, {hh}")
    e(f"v_and_b32 {hh}, 0xffff0000, {t0}")
    e(f"v_lshlrev_b32 {t1}, 16, {vB1}")
    e(f"v_add_f32 {hh}, {hh}, {t1}")
    e(f"v_cvt_pk_bf16_f32 {t0}, {hh}, {hh}")
    e(f"v_and_b32 {hh}, 0xffff0000, {t0}")
    g1 = "v31"
    e(f"v_mul_f32 {g1}, {hh}, {hh}")
    e(f"v_mul_f32 {g1}, {g1}, {hh}")
    e(f"v_mul_f32 {g1}, 0x3d372713, {g1}")
    e(f"v_add_f32 {g1}, {hh}, {g1}")
    e(f"v_mul_f32 {g1}, 0x3f4c422a, {g1}")
    e(f"v_mul_f32 {g1}, 0x4038aa3b, {g1}")
    e(f"v_exp_f32 {g1}, {g1}")
    nop(1)
    e(f"v_add_f32 {g1}, 1.0, {g1}")
    e(f"v_rcp_f32 {g1}, {g1}")
    nop(1)
    e(f"v_fma_f32 {g1}, {g1}, -2.0, 1.0")
    e(f"v_add_f32 {g1}, 1.0, {g1}")
    e(f"v_mul_f32 {g1}, 0.5, {g1}")
    e(f"v_mul_f32 {hh}, {hh}, {g1}")
    e(f"v_cvt_pk_bf16_f32 {t0}, {hh}, {hh}")
    e(f"v_and_b32 {hh}, 0xffff0000, {t0}")
    e(f"v_cvt_f32_u32 {g1}, s45")
    e(f"v_mul_f32 {hh}, {hh}, {g1}")
    lds_wait(PROG, TH_W2)
    e(f"s_mul_i32 s14, {S_WAVE}, 1280")
    e(f"s_add_u32 s14, s14, {W2L}")
    e(f"v_add_u32 {vOff[5]}, s14, v3")
    for i in range(5):
        e(f"ds_read_b32 {vW2[i]}, {vOff[5]} offset:{256*i}")
    acc = ["v%d" % i for i in range(34, 44)]
    e("s_waitcnt lgkmcnt(0)")
    for i in range(5):
        e(f"v_lshlrev_b32 {t0}, 16, {vW2[i]}")
        e(f"v_and_b32 {t1}, 0xffff0000, {vW2[i]}")
        e(f"v_mul_f32 {acc[2*i]}, {hh}, {t0}")
        e(f"v_mul_f32 {acc[2*i+1]}, {hh}, {t1}")
    lds_wait(PROG, TH_WO)
    for i in range(5):
        e(f"ds_read_b32 {vWo[i]}, {vOff[5]} offset:{WOL-W2L+256*i}")
        e(f"ds_read_b32 {vWo[5+i]}, {vOff[5]} offset:{WOL-W2L+10240+256*i}")
    lds_wait(FLAGD, 1)
    stamp()
    e(f"s_lshl_b32 s12, {S_WAVE}, 2")
    e(f"v_mov_b32 {vOff[4]}, s12")
    c0, c1 = "v30", "v31"
    e(f"ds_read_b32 {c0}, {vOff[4]} offset:{CF}")
    e(f"ds_read_b32 {c1}, {vOff[4]} offset:{CF+32}")
    e("s_waitcnt lgkmcnt(0)")
    for r in range(2):
        cc = c0 if r == 0 else c1
        for i in range(5):
            e(f"v_lshlrev_b32 {t0}, 16, {vWo[5*r+i]}")
            e(f"v_and_b32 {t1}, 0xffff0000, {vWo[5*r+i]}")
            e(f"v_fmac_f32 {acc[2*i]}, {cc}, {t0}")
            e(f"v_fmac_f32 {acc[2*i+1]}, {cc}, {t1}")
    e(f"s_mul_i32 s12, {S_WAVE}, 2560")
    e(f"v_add_u32 {vOff[4]}, s12, v5")
    for i in range(5):
        e(f"ds_write_b64 {vOff[4]}, v[{34+2*i}:{35+2*i}] offset:{OUTP+512*i}")
    e("s_waitcnt lgkmcnt(0)")
    lds_arrive(CNTE)
    e(f"s_cmp_ge_u32 {S_WAVE}, 5")
    e("s_cbranch_scc1 L_dflush")
    lds_wait(CNTE, 16)
    stamp()
    e(f"s_lshl_b32 s12, {S_WAVE}, 9")
    e(f"v_add_u32 {vOff[4]}, s12, v5")
    rr = ["v%d" % i for i in range(64, 80)]
    for i in range(8):
        e(f"ds_read_b64 v[{64+2*i}:{65+2*i}], {vOff[4]} offset:{OUTP+2560*i}")
    e(f"s_lshl_b32 s12, {S_WAVE}, 6")
    e(f"v_add_u32 {vOff[5]}, s12, v1")
    e(f"v_lshrrev_b32 {vOff[3]}, 1, {vOff[5]}")
    e(f"v_lshlrev_b32 {vOff[3]}, 13, {vOff[3]}")
    e(f"v_and_b32 {vOff[5]}, 1, {vOff[5]}")
    e(f"v_lshl_add_u32 {vOff[3]}, {vOff[5]}, 4, {vOff[3]}")
    e(f"s_lshl_b32 s12, {S_WG}, 5")
    e(f"s_add_u32 s12, s12, {FREG}")
    e(f"v_add_u32 {vOff[3]}, s12, {vOff[3]}")
    e("s_waitcnt lgkmcnt(0)")
    e(f"v_add_f32 v80, {rr[0]}, {rr[2]}")
    e(f"v_add_f32 v82, {rr[1]}, {rr[3]}")
    for i in range(2, 8):
        e(f"v_add_f32 v80, {rr[2*i]}, v80")
        e(f"v_add_f32 v82, {rr[2*i+1]}, v82")
    e(f"v_add_u32 v81, 1, {vTag}")
    e(f"v_add_u32 v83, 1, {vTag}")
    e(f"global_store_dwordx4 {vOff[3]}, v[80:83], {P_WS} sc1")

def gen_comm():
    stamp()
    e("v_mov_b32 v16, 0")
    e("v_mov_b32 v17, 0")
    e(f"ds_write_b64 v6, v[16:17] offset:{SYNC}")
    e(f"ds_write_b64 v6, v[16:17] offset:{SYNC+8}")
    e(f"ds_write_b64 v6, v[16:17] offset:{SYNC+16}")
    e(f"global_load_dword v7, v6, {P_WS} sc1")
    e(f"s_min_u32 s12, {S_WG}, 159")
    e("s_lshl_b32 s12, s12, 3")
    e("v_mov_b32 v14, s12")
    e(f"global_load_dwordx2 v[10:11], v14, {P_X}")
    e(f"global_load_dwordx2 v[12:13], v14, {P_B2}")
    e(f"s_lshl_b32 s13, {S_H}, 3")
    e(f"s_add_u32 s14, s13, {S_S}")
    e("s_waitcnt lgkmcnt(0)")
    e("s_barrier")
    e("s_waitcnt vmcnt(0)")
    e("v_add_u32 v7, 1, v7")
    nop(1)
    e("v_readfirstlane_b32 s46, v7")
    lds_wait(CNTA, 8, vt="v15")
    stamp()
    for i in range(8):
        e(f"ds_read_b64 v[{20+2*i}:{21+2*i}], v5 offset:{QP+512*i}")
    e("s_lshl_b32 s15, s14, 10")
    e(f"s_add_u32 s15, s15, {QREG}")
    e("v_add_u32 v9, s15, v4")
    e("s_waitcnt lgkmcnt(0)")
    e("v_add_f32 v16, v20, v22")
    e("v_add_f32 v18, v21, v23")
    for i in range(2, 8):
        e(f"v_add_f32 v16, v{20+2*i}, v16")
        e(f"v_add_f32 v18, v{21+2*i}, v18")
    e("v_mov_b32 v17, s46")
    e("v_mov_b32 v19, s46")
    e(f"global_store_dwordx4 v9, v[16:19], {P_WS} sc1")
    e("s_lshl_b32 s15, s13, 10")
    e(f"s_add_u32 s15, s15, {QREG}")
    e("v_add_u32 v9, s15, v4")
    e("v_add_u32 v14, 0x1000, v9")
    e(f"s_mov_b32 s47, {SPIN}")
    e("L_pollq:")
    for n in range(8):
        base = "v9" if n < 4 else "v14"
        e(f"global_load_dwordx4 v[{20+4*n}:{23+4*n}], {base}, {P_WS} offset:{1024*(n%4)} sc1")
    e("s_waitcnt vmcnt(0)")
    e("v_xor_b32 v15, s46, v21")
    for n in range(8):
        for k in (1, 3):
            if n == 0 and k == 1:
                continue
            e(f"v_xor_b32 v16, s46, v{20+4*n+k}")
            e("v_or_b32 v15, v15, v16")
    poll_tail("L_pollq", "v15", "s47")
    stamp()
    e("v_add_f32 v16, v20, v24")
    e("v_add_f32 v17, v22, v26")
    for n in range(2, 8):
        e(f"v_add_f32 v16, v{20+4*n}, v16")
        e(f"v_add_f32 v17, v{22+4*n}, v17")
    e("v_cvt_pk_bf16_f32 v16, v16, v17")
    e(f"ds_write_b32 v3, v16 offset:{QL}")
    e("s_waitcnt lgkmcnt(0)")
    lds_set(FLAGB)
    lds_wait(CNTC, 8, vt="v15")
    stamp()
    for i in range(8):
        e(f"ds_read_b64 v[{20+2*i}:{21+2*i}], v5 offset:{OP+512*i}")
    for i in range(8):
        e(f"ds_read_b64 v[{40+2*i}:{41+2*i}], v6 offset:{ML+8*i}")
    e("s_waitcnt lgkmcnt(0)")
    e("v_max3_f32 v16, v40, v42, v44")
    e("v_max3_f32 v16, v16, v46, v48")
    e("v_max3_f32 v16, v16, v50, v52")
    e("v_max_f32 v16, v16, v54")
    for i in range(8):
        e(f"v_sub_f32 v{40+2*i}, v{40+2*i}, v16")
        e(f"v_mul_f32 v{40+2*i}, {LOG2E}, v{40+2*i}")
        e(f"v_exp_f32 v{40+2*i}, v{40+2*i}")
    nop(1)
    e("v_mul_f32 v17, v40, v41")
    e("v_mul_f32 v60, v40, v20")
    e("v_mul_f32 v62, v40, v21")
    for i in range(1, 8):
        e(f"v_fmac_f32 v17, v{40+2*i}, v{41+2*i}")
        e(f"v_fmac_f32 v60, v{40+2*i}, v{20+2*i}")
        e(f"v_fmac_f32 v62, v{40+2*i}, v{21+2*i}")
    e("v_mov_b32 v61, s46")
    e("v_mov_b32 v63, s46")
    e("s_lshl_b32 s15, s14, 11")
    e(f"s_add_u32 s15, s15, {OREG}")
    e("v_add_u32 v9, s15, v4")
    e(f"global_store_dwordx4 v9, v[60:63], {P_WS} offset:64 sc1")
    e("v_mov_b32 v56, v16")
    e("v_mov_b32 v57, s46")
    e("v_mov_b32 v58, v17")
    e("v_mov_b32 v59, s46")
    e("v_mov_b32 v14, s15")
    e("s_mov_b64 exec, 1")
    e(f"global_store_dwordx4 v14, v[56:59], {P_WS} sc1")
    e("s_mov_b64 exec, -1")
    e("s_lshl_b32 s15, s13, 11")
    e(f"s_add_u32 s15, s15, {OREG}")
    e("v_mov_b32 v70, s15")
    e("v_and_b32 v9, 15, v1")
    e("v_lshlrev_b32 v9, 3, v9")
    e(f"s_lshl_b32 s12, {S_S}, 7")
    e("s_add_u32 s12, s12, s15")
    e("v_add_u32 v74, s12, v9")
    for k in range(1, 4):
        e(f"v_add_u32 v{70+k}, {4096*k}, v70")
        e(f"v_add_u32 v{74+k}, {4096*k}, v74")
    e(f"s_mov_b32 s47, {SPIN}")
    e("L_pollo:")
    for n in range(8):
        e(f"global_load_dwordx4 v[{20+4*n}:{23+4*n}], v{70+n//2}, {P_WS} offset:{2048*(n%2)} sc1")
        e(f"global_load_dwordx2 v[{52+2*n}:{53+2*n}], v{74+n//2}, {P_WS} offset:{2048*(n%2)+64} sc1")
    e("s_waitcnt vmcnt(0)")
    e("v_xor_b32 v16, s46, v21")
    for n in range(8):
        for r in [21+4*n, 23+4*n, 53+2*n]:
            if r == 21:
                continue
            e(f"v_xor_b32 v17, s46, v{r}")
            e("v_or_b32 v16, v16, v17")
    poll_tail("L_pollo", "v16", "s47")
    stamp()
    e("v_max3_f32 v16, v20, v24, v28")
    e("v_max3_f32 v16, v16, v32, v36")
    e("v_max3_f32 v16, v16, v40, v44")
    e("v_max_f32 v16, v16, v48")
    for n in range(8):
        e(f"v_sub_f32 v{20+4*n}, v{20+4*n}, v16")
        e(f"v_mul_f32 v{20+4*n}, {LOG2E}, v{20+4*n}")
        e(f"v_exp_f32 v{20+4*n}, v{20+4*n}")
    nop(1)
    e("v_mul_f32 v17, v20, v22")
    e("v_mul_f32 v18, v20, v52")
    for n in range(1, 8):
        e(f"v_fmac_f32 v17, v{20+4*n}, v{22+4*n}")
        e(f"v_fmac_f32 v18, v{20+4*n}, v{52+2*n}")
    e("v_rcp_f32 v17, v17")
    nop(1)
    e("v_mul_f32 v18, v18, v17")
    e("v_cvt_pk_bf16_f32 v18, v18, v18")
    e("v_and_b32 v18, 0xffff0000, v18")
    e("v_and_b32 v9, 15, v1")
    e("v_lshlrev_b32 v9, 2, v9")
    e(f"ds_write_b32 v9, v18 offset:{CF}")
    e("s_waitcnt lgkmcnt(0)")
    lds_set(FLAGD)
    e(f"s_cmp_ge_u32 {S_WG}, 160")
    e("s_cbranch_scc1 L_cflush")
    e(f"s_lshl_b32 s15, {S_WG}, 13")
    e(f"s_add_u32 s15, s15, {FREG}")
    e("v_add_u32 v9, s15, v4")
    e("v_add_u32 v14, 0x1000, v9")
    e(f"s_mov_b32 s47, {SPIN}")
    e("L_pollf:")
    for n in range(8):
        base = "v9" if n < 4 else "v14"
        e(f"global_load_dwordx4 v[{20+4*n}:{23+4*n}], {base}, {P_WS} offset:{1024*(n%4)} sc1")
    e("s_waitcnt vmcnt(0)")
    e("v_xor_b32 v15, s46, v21")
    for n in range(8):
        for k in (1, 3):
            if n == 0 and k == 1:
                continue
            e(f"v_xor_b32 v16, s46, v{20+4*n+k}")
            e("v_or_b32 v15, v15, v16")
    poll_tail("L_pollf", "v15", "s47")
    stamp()
    e("v_add_f32 v16, v20, v24")
    e("v_add_f32 v17, v22, v26")
    for n in range(2, 8):
        e(f"v_add_f32 v16, v{20+4*n}, v16")
        e(f"v_add_f32 v17, v{22+4*n}, v17")
    for mod in ("row_ror:2", "row_ror:4", "row_ror:8"):
        nop(2)
        e(f"v_add_f32_dpp v16, v16, v16 {mod} row_mask:0xf bank_mask:0xf")
        e(f"v_add_f32_dpp v17, v17, v17 {mod} row_mask:0xf bank_mask:0xf")
    nop(1)
    for r in range(4):
        for p in range(2):
            e(f"v_readlane_b32 s{48+4*r+2*p}, v16, {16*r+p}")
            e(f"v_readlane_b32 s{49+4*r+2*p}, v17, {16*r+p}")
    nop(2)
    for c in range(4):
        e(f"v_mov_b32 v{20+c}, s{48+c}")
        for r in range(1, 4):
            e(f"v_add_f32 v{20+c}, s{48+4*r+c}, v{20+c}")
    e("v_lshlrev_b32 v24, 16, v10")
    e("v_and_b32 v25, 0xffff0000, v10")
    e("v_lshlrev_b32 v26, 16, v11")
    e("v_and_b32 v27, 0xffff0000, v11")
    e("v_lshlrev_b32 v28, 16, v12")
    e("v_and_b32 v29, 0xffff0000, v12")
    e("v_lshlrev_b32 v30, 16, v13")
    e("v_and_b32 v31, 0xffff0000, v13")
    for c in range(4):
        e(f"v_add_f32 v{20+c}, v{20+c}, v{28+c}")
        e(f"v_add_f32 v{20+c}, v{20+c}, v{24+c}")
    e("v_cvt_pk_bf16_f32 v32, v20, v21")
    e("v_cvt_pk_bf16_f32 v33, v22, v23")
    e(f"s_lshl_b32 s12, {S_WG}, 3")
    e("v_mov_b32 v14, s12")
    e("s_mov_b64 exec, 1")
    e(f"global_store_dwordx2 v14, v[32:33], {P_OUT}")
    e(f"s_cmp_lg_u32 {S_WG}, 0")
    e("s_cbranch_scc1 L_cflush")
    e("v_mov_b32 v7, s46")
    e(f"global_store_dword v6, v7, {P_WS} sc1")

def main():
    gen()
    out = HEADER
    out += "; @launch grid=(256,1,1) block=(640,1,1) lds=%d\n" % LDS_BYTES
    out += '.amdgcn_target "amdgcn-amd-amdhsa--gfx950"\n.text\n'
    out += f".globl {KN}\n.p2align 8\n.type {KN},@function\n{KN}:\n"
    out += "\n".join(L) + "\n    s_endpgm\n"
    out += f""".section .rodata,"a"
.p2align 6
.amdhsa_kernel {KN}
  .amdhsa_next_free_vgpr 128
  .amdhsa_next_free_sgpr 100
  .amdhsa_accum_offset 128
  .amdhsa_group_segment_fixed_size 0
  .amdhsa_kernarg_size 104
  .amdhsa_user_sgpr_count 2
  .amdhsa_user_sgpr_kernarg_segment_ptr 1
  .amdhsa_system_sgpr_workgroup_id_x 1
.end_amdhsa_kernel
"""
    open(sys.argv[1], "w").write(out)

main()
```
